```python
import torch

def _softmax(x, axis=-1):
    return torch.softmax(x, dim=axis)
def _gelu(x):
    return torch.nn.functional.gelu(x, approximate="tanh")
def _silu(x):
    return torch.nn.functional.silu(x)
def _sigmoid(x):
    return torch.sigmoid(x)
def _layernorm(x, axis=-1, eps=1e-5):
    m = x.mean(dim=axis, keepdim=True)
    v = x.var(dim=axis, keepdim=True, unbiased=False)
    return (x - m) / torch.sqrt(v + eps)
def _scatter_add(tgt, idx, src, axis=0):
    return tgt.clone().index_add_(axis, idx, src)
def _segment_sum(src, seg, n):
    out = torch.zeros((n,) + src.shape[1:], dtype=src.dtype)
    return out.index_add_(0, seg, src)
def _pad(x, pw):
    flat = tuple(v for pair in reversed(pw) for v in pair)
    return torch.nn.functional.pad(x, flat)

kernel_name = 'recurrent_scan__mha_block_cached__glu_gated_reglu__decode'

def setup_inputs():

    _w = (lambda a: (lambda t: t.to(torch.bfloat16) if t.is_floating_point() else t)(torch.as_tensor(a)))
    def _A_setup():
        B, Sq, D = 1, 1, 640
        H, Sk, Dh = 32, 32768, 192
        return {
            "x": _w((lambda *s: torch.randn(*s, dtype=torch.bfloat16) * 0.4)(B, Sq, D)),
            "k_cache": _w((lambda *s: torch.randn(*s, dtype=torch.bfloat16) * 1.6)(B, H, Sk, Dh)),
            "v_cache": _w((lambda *s: torch.randn(*s, dtype=torch.bfloat16) * 1.6)(B, H, Sk, Dh)),
            "wq": _w((lambda *s: torch.randn(*s, dtype=torch.bfloat16) * 1.6)(D, H * Dh) * (D ** -0.5)),
            "wo": _w((lambda *s: torch.randn(*s, dtype=torch.bfloat16) * 1.6)(H * Dh, D) * ((H * Dh) ** -0.5)),
        }
    _A_in = _A_setup()

    def _B_setup():
        B, S, D, F = 1, 1, 640, 1536
        return {
            "x": _w((lambda *s: torch.randn(*s, dtype=torch.bfloat16) * 0.4)(B, S, D)),
            "W_gate": _w((lambda *s: torch.randn(*s, dtype=torch.bfloat16) * 1.6)(D, F) * (2.0 / D) ** 0.5),
            "W_up": _w((lambda *s: torch.randn(*s, dtype=torch.bfloat16) * 1.6)(D, F) * (2.0 / D) ** 0.5),
            "W_down": _w((lambda *s: torch.randn(*s, dtype=torch.bfloat16) * 1.6)(F, D) * (1.0 / F) ** 0.5),
        }
    _B_in = _B_setup()

    return {
        "A_x": _A_in["x"],
        "A_k_cache": _A_in["k_cache"],
        "A_v_cache": _A_in["v_cache"],
        "A_wq": _A_in["wq"],
        "A_wo": _A_in["wo"],
        "B_x": _B_in["x"],
        "B_W_gate": _B_in["W_gate"],
        "B_W_up": _B_in["W_up"],
        "B_W_down": _B_in["W_down"],
    }

def reference(A_x, A_k_cache, A_v_cache, A_wq, A_wo, B_x, B_W_gate, B_W_up, B_W_down):
    def _A_ref(x, k_cache, v_cache, wq, wo):
        B, Sq, D = x.shape
        H, Dh = 32, 192
        q = (lambda x, *d: x.permute(*d))((x @ wq).reshape(B, Sq, H, Dh), 0, 2, 1, 3)
        scores = torch.einsum("bhqd,bhkd->bhqk", q, k_cache) * (Dh ** -0.5)
        p = _softmax(scores, axis=-1)
        o = torch.einsum("bhqk,bhkd->bhqd", p, v_cache)
        return (lambda x, *d: x.permute(*d))(o, 0, 2, 1, 3).reshape(B, Sq, H * Dh) @ wo

    def _B_ref(x, W_gate, W_up, W_down):
        gate = torch.einsum("bsd,df->bsf", x, W_gate)
        up = torch.einsum("bsd,df->bsf", x, W_up)
        gate = gate * (lambda x, dt: x.to(dt))(gate > 0, gate.dtype)
        h = gate * up
        return torch.einsum("bsf,fd->bsd", h, W_down)

    x = A_x
    xn = _layernorm(x, axis=-1)
    s = _A_ref(xn, A_k_cache, A_v_cache, A_wq, A_wo)
    g = _silu(_B_ref(xn, B_W_gate, B_W_up, B_W_down))
    return x + s * g
```

```python
import re

TRANS = ('v_exp_f32','v_log_f32','v_rcp_f32','v_rsq_f32','v_sqrt_f32','v_sin_f32','v_cos_f32')

def regs_of(op):
    op = op.strip()
    neg = op.lstrip('-')
    m = re.fullmatch(r'(abs\()?\|?([vas])(\d+)\|?\)?', neg)
    if m: return [(m.group(2), int(m.group(3)))]
    m = re.fullmatch(r'([vas])\[(\d+):(\d+)\]', neg)
    if m: return [(m.group(1), i) for i in range(int(m.group(2)), int(m.group(3))+1)]
    if neg in ('vcc',): return [('s','vcc')]
    if neg in ('exec',): return [('s','exec')]
    if neg in ('m0',): return [('s','m0')]
    return []

class Ins:
    def __init__(self, text):
        self.text = text
        t = text.split(';')[0].strip()
        self.is_label = t.endswith(':')
        self.raw = t
        self.mn = ''
        self.ops = []
        self.w = set(); self.r = set()
        self.cls = 'other'
        if not t or self.is_label or t.startswith('.'):
            self.cls = 'label' if self.is_label else 'none'
            return
        parts = t.split(None, 1)
        self.mn = parts[0]
        rest = parts[1] if len(parts) > 1 else ''
        ops = []; cur = ''; depth = 0
        for ch in rest:
            if ch == '[': depth += 1
            if ch == ']': depth -= 1
            if ch == ',' and depth == 0:
                ops.append(cur.strip()); cur = ''
            else: cur += ch
        if cur.strip(): ops.append(cur.strip())
        mods = ''
        if ops:
            sp = ops[-1].split(None, 1)
            if len(sp) == 2 and not ops[-1].startswith('hwreg') and not self.mn.startswith('s_waitcnt'):
                ops[-1] = sp[0]; mods = sp[1]
        self.ops = ops; self.mods = mods
        mn = self.mn
        R = lambda o: set(regs_of(o))
        self.dpp = ('_dpp' in mn) or ('quad_perm' in mods) or ('row_' in mods)
        self.sdwa = '_sdwa' in mn
        self.mfma = mn.startswith('v_mfma')
        self.dot = mn.startswith('v_dot')
        self.trans = any(mn.startswith(x) for x in TRANS)
        self.srcC = set(); self.srcAB = set(); self.lanesel = set(); self.saddr = set(); self.sdata = set()
        if self.mfma:
            self.cls = 'mfma'
            self.w = R(ops[0]); self.srcAB = R(ops[1]) | R(ops[2]); self.srcC = R(ops[3]); self.r = self.srcAB | self.srcC
        elif mn.startswith('v_cmp'):
            self.cls = 'valu'; self.w = R(ops[0])
            for o in ops[1:]: self.r |= R(o)
        elif mn.startswith('v_readlane') or mn.startswith('v_readfirstlane'):
            self.cls = 'valu'; self.w = R(ops[0]); self.r = R(ops[1])
            if len(ops) > 2: self.lanesel = R(ops[2]); self.r |= self.lanesel
        elif mn.startswith('v_writelane'):
            self.cls = 'valu'; self.w = R(ops[0]); self.r = R(ops[1]) | R(ops[0]); self.lanesel = R(ops[2]); self.r |= self.lanesel
        elif mn.startswith('v_permlane'):
            self.cls = 'valu'; self.w = R(ops[0]) | R(ops[1]); self.r = set(self.w)
        elif mn.startswith('v_'):
            self.cls = 'valu'; self.w = R(ops[0])
            for o in ops[1:]: self.r |= R(o)
            if mn.startswith('v_fmac') or mn.startswith('v_dot2c') or self.dpp or mn.startswith('v_mac'):
                self.r |= R(ops[0])
            if mn.startswith('v_cndmask') and len(ops) == 3: self.r.add(('s','vcc'))
            if '_co_' in mn:
                self.w |= R(ops[1])
        elif mn.startswith('buffer_') or mn.startswith('global_'):
            self.cls = 'vmem'
            lds = ' lds' in (' ' + mods) or mods.endswith('lds')
            self.lds = lds
            if mn.startswith('buffer_load') and not lds:
                self.w = R(ops[0]); self.r = R(ops[1]); self.saddr = R(ops[2]) | R(ops[3])
            elif mn.startswith('buffer_load') and lds:
                self.r = R(ops[0]); self.saddr = R(ops[1]) | R(ops[2]) | {('s','m0')}
            elif mn.startswith('buffer_store'):
                self.sdata = R(ops[0]); self.r = R(ops[0]) | R(ops[1]); self.saddr = R(ops[2]) | R(ops[3])
            elif mn.startswith('buffer_atomic'):
                self.sdata = R(ops[0]); self.r = R(ops[0]) | R(ops[1]); self.saddr = R(ops[2]) | R(ops[3])
                if 'sc0' in mods: self.w = R(ops[0])
            else:
                raise Exception('unhandled vmem ' + t)
            self.r |= self.saddr
        elif mn.startswith('ds_'):
            self.cls = 'ds'
            if mn.startswith('ds_read') or mn.startswith('ds_bpermute') or mn.startswith('ds_swizzle'):
                self.w = R(ops[0])
                for o in ops[1:]: self.r |= R(o)
            else:
                for o in ops: self.r |= R(o)
        elif mn.startswith('s_'):
            if mn in ('s_nop',): self.cls = 'nop'
            elif mn.startswith('s_waitcnt'): self.cls = 'wait'
            elif mn.startswith('s_cbranch') or mn == 's_branch': self.cls = 'branch'
            elif mn in ('s_barrier','s_endpgm','s_sleep','s_setprio'): self.cls = 'misc'
            elif mn.startswith('s_load') or mn.startswith('s_memrealtime') or mn.startswith('s_memtime'):
                self.cls = 'smem'; self.w = R(ops[0])
                for o in ops[1:]: self.r |= R(o)
            else:
                self.cls = 'salu'
                if mn.startswith('s_cmp') or mn.startswith('s_bitcmp'):
                    for o in ops: self.r |= R(o)
                else:
                    self.w = R(ops[0])
                    for o in ops[1:]: self.r |= R(o)
                    if 'saveexec' in mn: self.w.add(('s','exec'))
    def states(self):
        if self.cls == 'nop': return int(self.ops[0], 0) + 1
        if self.cls in ('label','none'): return 0
        return 1

def need(p, c):
    n = 0
    pv = {x for x in p.w if x[0] in 'va'}
    ps = {x for x in p.w if x[0] == 's'}
    if p.cls == 'valu':
        if c.cls == 'valu':
            if c.dpp and (pv & c.r): n = max(n, 2)
            if (c.mn.startswith('v_readlane') or c.mn.startswith('v_readfirstlane')) and (pv & c.r): n = max(n, 1)
            if c.mn.startswith('v_permlane') and (pv & c.r): n = max(n, 2)
            if ps & c.lanesel: n = max(n, 4)
            if ps & c.r: n = max(n, 2)
            if p.trans and not c.trans and (pv & c.r): n = max(n, 1)
            if p.sdwa and (pv & c.r): n = max(n, 1)
            if p.dot and (pv & (c.r | c.w)):
                same = (c.mn == p.mn)
                if same:
                    srcC = set(regs_of(c.ops[3])) if len(c.ops) > 3 else set(regs_of(c.ops[0]))
                    ab = set(regs_of(c.ops[1])) | set(regs_of(c.ops[2]))
                    if pv & ab: n = max(n, 3)
                else: n = max(n, 3)
        if c.cls == 'mfma':
            if pv & c.r: n = max(n, 3 if p.dot else 2)
        if c.cls == 'vmem':
            if ps & c.saddr: n = max(n, 5)
            if p.dot and (pv & c.r): n = max(n, 3)
            if p.trans and (pv & c.r): n = max(n, 1)
        if c.cls == 'ds':
            if p.dot and (pv & c.r): n = max(n, 3)
            if p.trans and (pv & c.r): n = max(n, 1)
    if p.cls == 'mfma':
        passes = 8 if '32x32' in p.mn else 4
        big = {4: 8, 8: 12}[passes]; ovl = {4: 6, 8: 10}[passes]
        if c.cls == 'mfma':
            if pv & c.srcAB: n = max(n, big)
            if pv & c.srcC and not (c.srcC == pv and c.mn == p.mn): n = max(n, ovl)
        elif c.cls in ('valu','vmem','ds'):
            if pv & (c.r | c.w): n = max(n, big)
            if c.cls == 'valu' and (p.srcC & c.w): n = max(n, {4: 3, 8: 7}[passes])
    if p.cls == 'salu':
        if ('s','m0') in ps:
            if c.cls == 'vmem' and getattr(c, 'lds', False): n = max(n, 1)
            if c.cls == 'valu' and ('s','m0') in c.lanesel: n = max(n, 1)
    if p.cls == 'vmem' and p.sdata and ('x4' in p.mn or 'x3' in p.mn):
        if c.cls == 'valu' and (p.sdata & c.w): n = max(n, 2)
        elif c.cls in ('ds','vmem') and (p.sdata & c.w): n = max(n, 1)
    return n

WINDOW = 14

class Asm:
    def __init__(self):
        self.lines = []
    def __call__(self, text):
        for t in text.split('\n'):
            t = t.strip()
            if t: self.lines.append(t)
    def label(self, name): self.lines.append(name + ':')
    def finish(self, autofix=True):
        ins = [Ins(t) for t in self.lines]
        out = []
        nfix = 0
        for c in ins:
            if c.cls in ('label','none','nop'):
                out.append(c); continue
            dist = 0; req = 0
            k = len(out) - 1; seen = 0
            while k >= 0 and dist < WINDOW:
                p = out[k]
                if p.cls not in ('label','none'):
                    nd = need(p, c)
                    if nd > dist: req = max(req, nd - dist)
                    dist += p.states()
                    if p.cls == 'branch' and p.mn == 's_branch': break
                    if p.mn == 's_endpgm': break
                k -= 1
            if req > 0:
                assert autofix
                nfix += 1
                while req > 0:
                    m = min(req, 16)
                    out.append(Ins(f's_nop {m-1}')); req -= m
            out.append(c)
        labels = {c.raw[:-1]: i for i, c in enumerate(out) if c.is_label}
        errs = []
        for i, b in enumerate(out):
            if b.cls != 'branch': continue
            tgt = labels.get(b.ops[0])
            if tgt is None: raise Exception('no label ' + b.ops[0])
            prods = []; dist = 0; k = i
            while k >= 0 and dist < WINDOW:
                p = out[k]
                if p.cls not in ('label','none'):
                    prods.append((p, dist)); dist += p.states()
                    if k != i and ((p.cls == 'branch' and p.mn == 's_branch') or p.mn == 's_endpgm'): break
                k -= 1
            cd = 0; j = tgt + 1
            while j < len(out) and cd < WINDOW:
                c = out[j]
                if c.cls not in ('label','none'):
                    for p, d in prods:
                        tot = d + cd
                        nd = need(p, c)
                        if nd > tot: errs.append((p.text, c.text, nd, tot, b.text))
                    cd += c.states()
                    if (c.cls == 'branch' and c.mn == 's_branch') or c.mn == 's_endpgm': break
                j += 1
        if errs:
            for e in errs: print('EDGE HAZARD', e)
            raise Exception('edge hazards')
        self.nfix = nfix
        return '\n'.join(c.text for c in out)
```

```python
import sys, argparse, struct
from asmlib import Asm

NAME = 'recurrent_scan__mha_block_cached__glu_gated_reglu__decode'
TOT = 402653184
HB = 12582912
NT = 512
TILEB = 6144
GBS = NT * TILEB
LOG2E = 0x3fb8aa3b
NLOG2E = 0xbfb8aa3b
SCALE = 0x3d93cd3a
assert struct.unpack('<I', struct.pack('<f', 192 ** -0.5))[0] == SCALE
def f32(x): return struct.unpack('<I', struct.pack('<f', x))[0]

WS_CTR = 0x1000
WS_QP = 0x10000
WS_OP = 0x50000
WS_YP = 0xD0000
WS_BP = 0xF0000
WS_GP = 0x110000
WS_DBG = 0x200000
WS_SIZE = 0x400000
L_QBF = 0
L_ML = 512
L_XDUP = 1024
L_ODUP = 3584
L_HDUP = 4352
L_SCR = 4608
L_DW = 9728
L_STAMP = 15872
L_PF = 16384
OFFS = [g * 3072 + j * 128 for g in range(2) for j in range(3)]
VALID_LO, VALID_HI = 0x00ff00ff, 0xff00ff00

def gen(skip=0, SE=48, P=4, D=2, NL=3, mix=1, dbg=0, ts=0, nt='nt', spin=200000, prio=3, paced=1, slowsleep=32, bar0=1):
    LDS_SIZE = L_PF + 4 * NL * 12288
    a = Asm()
    a('s_cmp_ge_u32 s2, 256')
    a('s_cbranch_scc1 L_exit')
    if ts: a('s_memrealtime s[90:91]')
    a('s_load_dwordx16 s[40:55], s[0:1], 0')
    a('s_load_dwordx8 s[56:63], s[0:1], 64')
    a('v_lshrrev_b32 v1, 6, v0')
    a('v_and_b32 v0, 63, v0')
    a('v_readfirstlane_b32 s3, v1')
    a('s_lshr_b32 s4, s2, 3')
    a('s_and_b32 s5, s2, 7')
    a('v_and_b32 v6, 1, v0')
    a('v_lshlrev_b32 v6, 4, v6')
    a('v_mov_b32 v7, 0xffff')
    a('v_lshlrev_b32 v7, v6, v7')
    a('v_bfe_u32 v6, v0, 1, 2')
    for d in range(4):
        a(f'v_cmp_eq_u32 vcc, {d}, v6')
        a(f'v_cndmask_b32 v{20+d}, 0, v7, vcc')
    a('v_lshrrev_b32 v6, 3, v0')
    a('v_and_b32 v7, 7, v0')
    a('s_waitcnt lgkmcnt(0)')
    a('s_mov_b32 s16, s62'); a('s_and_b32 s17, s63, 0xffff'); a(f's_mov_b32 s18, {WS_SIZE}'); a('s_mov_b32 s19, 0x20000')
    a('s_cmp_eq_u32 s3, 4')
    a('s_cbranch_scc1 L_helper')

    KB = [64, 88, 112, 136]
    VB = [0, 24, 48, 72]
    DR = [40, 44, 48]
    RES = [3, 4, 5]
    SOFF = [22, 23, 21]
    a('s_mov_b32 s8, s42'); a('s_and_b32 s9, s43, 0xffff'); a(f's_mov_b32 s10, {TOT}'); a('s_mov_b32 s11, 0x20000')
    a('s_mov_b32 s12, s44'); a('s_and_b32 s13, s45, 0xffff'); a(f's_mov_b32 s14, {TOT}'); a('s_mov_b32 s15, 0x20000')
    a('v_mul_u32_u24 v1, 384, v6')
    a('v_lshlrev_b32 v2, 4, v7')
    a('v_add_u32 v1, v1, v2')
    if mix: a('s_add_u32 s35, s3, s5'); a('s_and_b32 s35, s35, 3')
    else: a('s_mov_b32 s35, s3')
    a(f's_mul_i32 s20, s4, {HB}')
    a(f's_mul_i32 s33, s35, {GBS}')
    a('s_add_u32 s20, s20, s33')
    a('s_lshl_b32 s33, s4, 2'); a('s_add_u32 s33, s33, s35'); a('s_lshl_b32 s33, s33, 8'); a(f's_add_u32 s33, s33, {WS_CTR}')
    a('v_mov_b32 v2, s33')
    a('s_mov_b32 s29, 0x7ff00000')
    for r in RES: a(f'v_mov_b32 v{r}, 0')
    a('v_mov_b32 v24, 0')
    for r in range(40, 52): a(f'v_mov_b32 v{r}, 0')
    a('s_mov_b32 s25, 0xff800000')
    a('v_mov_b32 v29, 0')
    if dbg & 1: a('v_mov_b32 v52, -1'); a('v_mov_b32 v53, -1')
    a(f's_mov_b32 s27, {SCALE}'); a(f's_mov_b32 s28, {LOG2E}')
    q = []
    def issueK(buf, so, tag=None):
        for j, o in enumerate(OFFS):
            r = KB[buf] + 4 * j
            a(f'buffer_load_dwordx4 v[{r}:{r+3}], v1, s[8:11], {so} offen offset:{o} {nt}')
        q.extend([('K', buf if tag is None else tag)] * 6)
    def issueV(buf, so, tag=None):
        for j, o in enumerate(OFFS):
            r = VB[buf] + 4 * j
            a(f'buffer_load_dwordx4 a[{r}:{r+3}], v1, s[12:15], {so} offen offset:{o} {nt}')
        q.extend([('V', buf if tag is None else tag)] * 6)
    def issueL(slot, so, tag):
        for isV in (0, 1):
            for j, o in enumerate(OFFS):
                a(f's_add_u32 m0, s36, {slot*12288 + isV*6144 + j*1024 - o}')
                a(f'buffer_load_dwordx4 v1, s[{12 if isV else 8}:{15 if isV else 11}], {so} offen offset:{o} {nt} lds')
            q.extend([('V' if isV else 'K', tag)] * 6)
    def wait_for(tag):
        if tag not in q: return
        idx = max(i for i, t in enumerate(q) if t == tag)
        n = len(q) - 1 - idx
        assert n <= 63
        a(f's_waitcnt vmcnt({n})')
        del q[:idx + 1]
    def static_off(sreg, t):
        a(f's_add_u32 {sreg}, s5, {8*t}')
        a(f's_mul_i32 {sreg}, {sreg}, {TILEB}')
        a(f's_add_u32 {sreg}, {sreg}, s20')
    PT = P + NL
    if NL:
        a(f's_mul_i32 s36, s3, {NL*12288}'); a(f's_add_u32 s36, s36, {L_PF}')
        a('v_lshlrev_b32 v54, 4, v0'); a('v_add_u32 v54, s36, v54')
    if bar0: a('s_barrier')
    for t in range(PT):
        if paced and t >= D: wait_for(('V', ('p', t - D)))
        static_off('s30', t)
        if t < P:
            issueK(t, 's30', ('p', t)); issueV(t, 's30', ('p', t))
        else:
            issueL(t - P, 's30', ('p', t))
    a('s_barrier')
    a('v_lshlrev_b32 v6, 4, v7')
    for j in range(3):
        a(f'ds_read_b128 v[{8+4*j}:{11+4*j}], v6 offset:{L_QBF + 128*j}')
    a('s_waitcnt lgkmcnt(0)')
    rare = []
    cnt = [0]
    def qk(buf):
        if skip & 1: return
        kb = KB[buf]
        first = True
        for j in range(3):
            for i in range(4):
                for g in range(2):
                    src = '0' if first else f'v{25+g}'
                    a(f'v_dot2_f32_bf16 v{25+g}, v{kb + (g*3+j)*4 + i}, v{8+4*j+i}, {src}')
                first = False
    def softmax_part():
        if skip & 2: return
        for pat in ('quad_perm:[1,0,3,2]', 'quad_perm:[2,3,0,1]', 'row_half_mirror'):
            for g in range(2):
                a(f'v_add_f32_dpp v{25+g}, v{25+g}, v{25+g} {pat} row_mask:0xf bank_mask:0xf')
        a('v_cvt_pk_bf16_f32 v27, v25, v26')
        a('v_lshlrev_b32 v25, 16, v27')
        a('v_and_b32 v26, 0xffff0000, v27')
        a('v_mul_f32 v25, s27, v25')
        a('v_mul_f32 v26, s27, v26')
        a('v_cvt_pk_bf16_f32 v27, v25, v26')
        a('v_lshlrev_b32 v25, 16, v27')
        a('v_and_b32 v26, 0xffff0000, v27')
        a('v_max_f32 v28, v25, v26')
        a('v_cmp_lt_f32 vcc, s25, v28')
        k = cnt[0]; cnt[0] += 1
        a(f's_cbranch_vccnz L_rare{k}')
        a.label(f'L_ret{k}')
        rare.append(k)
        a('v_fma_f32 v25, v25, s28, v29')
        a('v_fma_f32 v26, v26, s28, v29')
        a('v_exp_f32 v25, v25')
        a('v_exp_f32 v26, v26')
        a('v_cvt_pk_bf16_f32 v27, v25, v25')
        a('v_cvt_pk_bf16_f32 v30, v26, v26')
        a('v_add_f32 v24, v24, v25')
        for d in range(4): a(f'v_and_b32 v{32+d}, v27, v{20+d}')
        a('v_add_f32 v24, v24, v26')
        for d in range(4): a(f'v_and_b32 v{36+d}, v30, v{20+d}')
    def pv(buf):
        if skip & 4: return
        vb = VB[buf]
        for g in range(2):
            for j in range(3):
                r = vb + (g*3+j)*4
                a(f'v_mfma_f32_16x16x32_bf16 v[{DR[j]}:{DR[j]+3}], v[{32+4*g}:{35+4*g}], a[{r}:{r+3}], v[{DR[j]}:{DR[j]+3}]')
    for n in range(PT):
        if n < P:
            buf = n
            wait_for(('K', ('p', n)))
        else:
            buf = 2 + ((n - P) & 1) if P == 4 else None
            assert buf is not None and buf >= D
            wait_for(('V', ('p', n)))
            for j in range(6):
                r = KB[buf] + 4*j
                a(f'ds_read_b128 v[{r}:{r+3}], v54 offset:{(n-P)*12288 + j*1024}')
            for j in range(6):
                r = VB[buf] + 4*j
                a(f'ds_read_b128 a[{r}:{r+3}], v54 offset:{(n-P)*12288 + 6144 + j*1024}')
            a('s_waitcnt lgkmcnt(6)')
        qk(buf)
        if n < D:
            static_off(f's{SOFF[n]}', PT + n)
            a(f'buffer_load_dword v{RES[n]}, v2, s[16:19], s29 offen'); q.append(('I', n))
            issueK(n, f's{SOFF[n]}')
        softmax_part()
        if n < P: wait_for(('V', ('p', n)))
        else: a('s_waitcnt lgkmcnt(0)')
        pv(buf)
        if n < D: issueV(n, f's{SOFF[n]}')
    if ts: a('s_memrealtime s[94:95]'); a('s_waitcnt lgkmcnt(0)')
    a(f's_mov_b32 s24, {PT}')
    a(f's_add_u32 s26, s5, {8*(PT+D)}')
    steady = []
    for b in range(D): steady += [('I',b)] + [('K',b)]*6 + [('V',b)]*6
    q[:] = [t for t in q if not isinstance(t[1], tuple)]
    assert q == steady[len(steady)-len(q):], (q, steady)
    q[:] = list(steady)
    a.label('L_loop')
    for b in range(D):
        a(f's_cmp_eq_u32 s{SOFF[b]}, {TOT}')
        a('s_cbranch_scc1 L_sdone')
        wait_for(('K', b))
        qk(b)
        a(f'v_readfirstlane_b32 s30, v{RES[b]}')
        a(f's_add_u32 s30, s30, {SE*8}')
        a(f's_cmp_lt_u32 s24, {SE-D}')
        a('s_cselect_b32 s30, s26, s30')
        a(f's_mul_i32 s31, s30, {TILEB}')
        a('s_add_u32 s31, s31, s20')
        a(f's_cmp_lt_u32 s30, {NT}')
        a(f's_cselect_b32 s{SOFF[b]}, s31, {TOT}')
        a('s_add_u32 s26, s26, 8')
        if dbg & 1:
            a(f's_add_u32 s32, s24, {D}'); a('s_and_b32 m0, s32, 63'); a('s_cmp_lt_u32 s32, 64')
            a(f's_cbranch_scc0 L_lg{b}'); a('v_writelane_b32 v52, s30, m0'); a(f's_branch L_lgd{b}')
            a.label(f'L_lg{b}'); a('v_writelane_b32 v53, s30, m0'); a.label(f'L_lgd{b}')
        a('s_mov_b64 exec, 1')
        a(f's_cmp_ge_u32 s24, {SE-2*D}')
        a(f's_cbranch_scc1 L_at{b}')
        a(f'buffer_load_dword v{RES[b]}, v2, s[16:19], s29 offen')
        a(f's_branch L_atd{b}')
        a.label(f'L_at{b}')
        a(f'v_mov_b32 v{RES[b]}, 1')
        a(f'buffer_atomic_add v{RES[b]}, v2, s[16:19], 0 offen sc0')
        a.label(f'L_atd{b}')
        q.append(('I', b))
        a('s_mov_b64 exec, -1')
        a('s_add_u32 s24, s24, 1')
        issueK(b, f's{SOFF[b]}')
        softmax_part()
        wait_for(('V', b))
        pv(b)
        issueV(b, f's{SOFF[b]}')
    assert q == steady, q
    a('s_branch L_loop')
    for k in rare:
        a.label(f'L_rare{k}')
        a('v_max_f32_dpp v28, v28, v28 row_ror:8 row_mask:0xf bank_mask:0xf')
        a('v_max_f32_dpp v28, v28, v28 row_bcast:15 row_mask:0xa bank_mask:0xf')
        a('v_max_f32_dpp v28, v28, v28 row_bcast:31 row_mask:0xc bank_mask:0xf')
        a('v_readlane_b32 s34, v28, 63')
        a('v_mov_b32 v31, s25')
        a('v_subrev_f32 v31, s34, v31')
        a('v_mul_f32 v31, s28, v31')
        a('v_exp_f32 v31, v31')
        a('s_mov_b32 s25, s34')
        a('v_mov_b32 v29, s34')
        a(f'v_mul_f32 v29, {NLOG2E:#x}, v29')
        a('v_mul_f32 v24, v24, v31')
        for r in range(40, 52): a(f'v_mul_f32 v{r}, v{r}, v31')
        a(f's_branch L_ret{k}')
    a.label('L_sdone')
    a('s_waitcnt vmcnt(0)')
    a('s_nop 7')
    a('v_add_f32_dpp v24, v24, v24 row_ror:8 row_mask:0xf bank_mask:0xf')
    a('v_add_f32_dpp v24, v24, v24 row_bcast:15 row_mask:0xa bank_mask:0xf')
    a('v_add_f32_dpp v24, v24, v24 row_bcast:31 row_mask:0xc bank_mask:0xf')
    a('v_readlane_b32 s30, v24, 63')
    a('v_lshrrev_b32 v6, 5, v0'); a('v_mul_u32_u24 v6, 768, v6')
    a('v_lshlrev_b32 v27, 5, v7'); a('v_add_u32 v6, v6, v27')
    a('v_bfe_u32 v27, v0, 4, 1'); a('v_lshlrev_b32 v27, 4, v27'); a('v_add_u32 v6, v6, v27')
    a('s_mul_i32 s31, s3, 1536'); a(f's_add_u32 s31, s31, {L_DW}'); a('v_add_u32 v6, s31, v6')
    a(f's_mov_b32 exec_lo, {VALID_LO:#x}'); a(f's_mov_b32 exec_hi, {VALID_HI:#x}')
    for j in range(3):
        a(f'ds_write_b128 v6, v[{DR[j]}:{DR[j]+3}] offset:{256*j}')
    a('s_mov_b64 exec, 1')
    a('v_mov_b32 v26, s25'); a('v_mov_b32 v27, s30')
    a('s_lshl_b32 s31, s3, 3'); a(f's_add_u32 s31, s31, {L_ML}'); a('v_mov_b32 v6, s31')
    a('ds_write_b64 v6, v[26:27]')
    a('s_mov_b64 exec, -1')
    if dbg & 1:
        a('v_writelane_b32 v52, s24, 0')
        a('s_lshl_b32 s32, s2, 2'); a('s_add_u32 s32, s32, s3'); a('s_lshl_b32 s32, s32, 9'); a(f's_add_u32 s32, s32, {WS_DBG + 0x20000}')
        a('v_lshlrev_b32 v6, 2, v0')
        a('buffer_store_dword v52, v6, s[16:19], s32 offen'); a('buffer_store_dword v53, v6, s[16:19], s32 offen offset:256')
    if ts:
        a('s_memrealtime s[92:93]'); a('s_waitcnt lgkmcnt(0)')
        a('s_lshl_b32 s32, s2, 3'); a('s_add_u32 s32, s32, s3'); a('s_lshl_b32 s32, s32, 4'); a(f's_add_u32 s32, s32, {WS_DBG + 0x10000}')
        a('v_mov_b32 v6, s32'); a('v_mov_b32 v26, s90'); a('v_mov_b32 v27, s92'); a('v_mov_b32 v28, s24'); a('v_mov_b32 v31, s94'); a('s_mov_b64 exec, 1')
        a('v_mov_b32 v29, v31')
        a('buffer_store_dwordx4 v[26:29], v6, s[16:19], 0 offen'); a('s_mov_b64 exec, -1')
    a('s_waitcnt lgkmcnt(0)')
    a('s_barrier')
    a('s_endpgm')

    def stamp(k):
        if not ts: return
        a('s_memrealtime s[84:85]'); a('s_waitcnt lgkmcnt(0)')
        a('s_mov_b64 s[86:87], exec'); a('s_mov_b64 exec, 1')
        a('v_mov_b32 v36, s84'); a(f'v_mov_b32 v37, {L_STAMP + 4*k}'); a('ds_write_b32 v37, v36'); a('s_waitcnt lgkmcnt(0)')
        a('s_mov_b64 exec, s[86:87]')
    a.label('L_helper')
    if prio: a(f's_setprio {prio}')
    def srd(base, lo, size):
        a(f's_mov_b32 s{base}, s{lo}'); a(f's_and_b32 s{base+1}, s{lo+1}, 0xffff'); a(f's_mov_b32 s{base+2}, {size}'); a(f's_mov_b32 s{base+3}, 0x20000')
    srd(12, 46, 640*6144*2)
    srd(8, 40, 1280)
    srd(24, 52, 640*1536*2)
    srd(28, 54, 640*1536*2)
    a('s_lshl_b32 s65, s4, 10'); a(f's_add_u32 s65, s65, {WS_CTR}')
    a('s_cmp_eq_u32 s5, 0'); a('s_cselect_b32 s65, s65, 0x7ff00000')
    a('v_lshlrev_b32 v5, 8, v0'); a('v_mov_b32 v13, 0')
    a('s_mov_b64 exec, 15')
    a('buffer_store_dword v13, v5, s[16:19], s65 offen sc1')
    a('s_mov_b64 exec, -1')
    a('v_mov_b32 v1, 0')
    a('buffer_load_dword v2, v1, s[16:19], 0 offen sc1')
    a('v_lshlrev_b32 v3, 2, v0')
    for i in range(5):
        a(f'buffer_load_dword v{8+i}, v3, s[8:11], 0 offen offset:{256*i}')
    a('v_mul_u32_u24 v4, 12288, v6'); a('v_lshlrev_b32 v5, 4, v7'); a('v_add_u32 v4, v4, v5')
    a(f's_mul_i32 s64, s5, {80*12288}'); a('s_mul_i32 s65, s4, 384'); a('s_add_u32 s64, s64, s65')
    for r in range(10):
        for j in range(3):
            reg = 40 + (r*3+j)*4
            a(f'buffer_load_dwordx4 v[{reg}:{reg+3}], v4, s[12:15], s64 offen offset:{128*j} {nt}')
        if r < 9: a(f's_add_u32 s64, s64, {8*12288}')
    a('v_mul_u32_u24 v4, 3072, v6'); a('v_add_u32 v4, v4, v5')
    a(f's_mul_i32 s64, s5, {80*3072}'); a('s_lshl_b32 s65, s4, 7'); a('s_add_u32 s64, s64, s65')
    a('s_cmp_lt_u32 s4, 24'); a('s_cselect_b32 s64, s64, 0x7ff00000')
    for r in range(10):
        a(f'buffer_load_dwordx4 a[{8*r}:{8*r+3}], v4, s[24:27], s64 offen {nt}')
        a(f'buffer_load_dwordx4 a[{8*r+4}:{8*r+7}], v4, s[28:31], s64 offen {nt}')
        if r < 9: a(f's_add_u32 s64, s64, {8*3072}')
    if bar0: a('s_barrier')
    srd(20, 48, 6144*640*2)
    srd(32, 56, 1536*640*2)
    srd(36, 58, 1280)
    if ts:
        a('v_lshlrev_b32 v1, 2, v0'); a(f'v_add_u32 v1, {L_STAMP}, v1'); a('v_mov_b32 v2, v2'); a('v_mov_b32 v14, 0'); a('ds_write_b32 v1, v14'); a('s_waitcnt lgkmcnt(0)')
    a('s_waitcnt vmcnt(50)')
    a('v_readfirstlane_b32 s66, v2')
    a('s_add_u32 s66, s66, 1')
    stamp(1)
    def wave_sum(v, s):
        for pat in ('quad_perm:[1,0,3,2]', 'quad_perm:[2,3,0,1]', 'row_half_mirror', 'row_mirror'):
            a(f'v_add_f32_dpp v{v}, v{v}, v{v} {pat} row_mask:0xf bank_mask:0xf')
        a(f'v_add_f32_dpp v{v}, v{v}, v{v} row_bcast:15 row_mask:0xa bank_mask:0xf')
        a(f'v_add_f32_dpp v{v}, v{v}, v{v} row_bcast:31 row_mask:0xc bank_mask:0xf')
        a(f'v_readlane_b32 {s}, v{v}, 63')
    def bfround(dst, src):
        a(f'v_cvt_pk_bf16_f32 v{dst}, v{src}, v{src}')
        a(f'v_and_b32 v{dst}, 0xffff0000, v{dst}')
    for i in range(5):
        a(f'v_lshlrev_b32 v{24+2*i}, 16, v{8+i}')
        a(f'v_and_b32 v{25+2*i}, 0xffff0000, v{8+i}')
    a('v_add_f32 v14, v24, v25')
    for i in range(2, 10): a(f'v_add_f32 v14, v14, v{24+i}')
    wave_sum(14, 's67')
    a('v_mov_b32 v14, s67')
    a(f'v_mul_f32 v14, {f32(1/640.):#x}, v14')
    a('v_sub_f32 v15, v24, v14'); a('v_mul_f32 v16, v15, v15')
    for i in range(1, 10):
        a(f'v_sub_f32 v15, v{24+i}, v14'); a('v_fmac_f32 v16, v15, v15')
    wave_sum(16, 's67')
    a('v_mov_b32 v16, s67')
    a(f'v_mul_f32 v16, {f32(1/640.):#x}, v16')
    bfround(16, 16)
    a(f'v_add_f32 v16, {f32(1e-5):#x}, v16')
    bfround(16, 16)
    a('v_sqrt_f32 v16, v16')
    bfround(16, 16)
    bfround(14, 14)
    a('v_rcp_f32 v17, v16')
    a('v_lshlrev_b32 v18, 3, v0')
    for i in range(5):
        for e in range(2):
            x = 24 + 2*i + e
            a(f'v_sub_f32 v{x}, v{x}, v14')
            bfround(x, x)
            a(f'v_mul_f32 v15, v{x}, v17')
            a(f'v_fma_f32 v19, -v15, v16, v{x}')
            a(f'v_fma_f32 v15, v19, v17, v15')
            a(f'v_cvt_pk_bf16_f32 v{x}, v15, v15')
        a(f'ds_write_b64 v18, v[{24+2*i}:{25+2*i}] offset:{L_XDUP + 512*i}')
    a('s_waitcnt lgkmcnt(0)')
    a('s_mul_i32 s67, s5, 320'); a('v_lshlrev_b32 v18, 2, v6'); a('v_add_u32 v18, s67, v18')
    for r in range(10):
        a(f'ds_read_b32 v{24+r}, v18 offset:{L_XDUP + 32*r}')
    for r in range(8, 20): a(f'v_mov_b32 v{r}, 0')
    a('v_lshlrev_b32 v38, 5, v7'); a('v_bfe_u32 v39, v0, 4, 1'); a('v_lshlrev_b32 v39, 4, v39'); a('v_add_u32 v38, v38, v39')
    a('v_lshrrev_b32 v39, 5, v0')
    a('s_waitcnt lgkmcnt(0)')
    stamp(2)
    DQ = [8, 12, 16]
    Areg = [34, 2]
    for r in range(10):
        A = Areg[r & 1]
        for d in range(4): a(f'v_and_b32 v{A+d}, v{24+r}, v{20+d}')
        a(f's_waitcnt vmcnt({20 + 27 - 3*r})')
        for j in range(3):
            reg = 40 + (r*3+j)*4
            a(f'v_mfma_f32_16x16x32_bf16 v[{DQ[j]}:{DQ[j]+3}], v[{A}:{A+3}], v[{reg}:{reg+3}], v[{DQ[j]}:{DQ[j]+3}]')
    stamp(3)
    a('v_mul_u32_u24 v1, 768, v39'); a('v_add_u32 v1, v1, v38')
    a(f's_mov_b32 exec_lo, {VALID_LO:#x}'); a(f's_mov_b32 exec_hi, {VALID_HI:#x}')
    for j in range(3):
        a(f'ds_write_b128 v1, v[{DQ[j]}:{DQ[j]+3}] offset:{L_SCR + 256*j}')
    a('s_mov_b64 exec, -1')
    a('v_mul_u32_u24 v2, 12, v0'); a(f'v_add_u32 v3, {L_SCR}, v2')
    a('v_lshlrev_b32 v4, 4, v0')
    a(f's_lshl_b32 s67, s2, 10'); a(f's_add_u32 s67, s67, {WS_QP}')
    a('s_waitcnt lgkmcnt(0)')
    for i in range(3):
        a(f'ds_read2_b32 v[{8+2*i}:{9+2*i}], v3 offset0:{i} offset1:{192+i}')
    a('s_waitcnt lgkmcnt(0)')
    a('v_add_f32 v16, v8, v9'); a('v_add_f32 v17, v10, v11'); a('v_add_f32 v18, v12, v13'); a('v_mov_b32 v19, s66')
    a('buffer_store_dwordx4 v[16:19], v4, s[16:19], s67 offen sc1')
    stamp(4)
    pollc = [0]
    def poll(loads, tagregs, sleep=1):
        k = pollc[0]; pollc[0] += 1
        a(f's_mov_b32 s70, {spin}')
        a.label(f'L_poll{k}')
        for t in loads: a(t)
        a('s_waitcnt vmcnt(0)')
        a(f'v_xor_b32 v5, s66, v{tagregs[0]}')
        for t in tagregs[1:]:
            a(f'v_xor_b32 v1, s66, v{t}'); a('v_or_b32 v5, v5, v1')
        a('v_cmp_ne_u32 vcc, 0, v5')
        a(f's_cbranch_vccz L_polld{k}')
        a('s_sub_u32 s70, s70, 1')
        a('s_cmp_eq_u32 s70, 0')
        a(f's_cbranch_scc1 L_polld{k}')
        a(f's_sleep {sleep}')
        a(f's_branch L_poll{k}')
        a.label(f'L_polld{k}')
    a('s_waitcnt vmcnt(1)')
    for r in range(8, 16): a(f'v_mov_b32 v{r}, 0')
    for r in range(10):
        A = Areg[r & 1]
        for d in range(4): a(f'v_and_b32 v{A+d}, v{24+r}, v{20+d}')
        a(f'v_mfma_f32_16x16x32_bf16 v[8:11], v[{A}:{A+3}], a[{8*r}:{8*r+3}], v[8:11]')
        a(f'v_mfma_f32_16x16x32_bf16 v[12:15], v[{A}:{A+3}], a[{8*r+4}:{8*r+7}], v[12:15]')
    a('v_lshlrev_b32 v1, 9, v39'); a('v_add_u32 v1, v1, v38')
    a(f's_mov_b32 exec_lo, {VALID_LO:#x}'); a(f's_mov_b32 exec_hi, {VALID_HI:#x}')
    a(f'ds_write_b128 v1, v[8:11] offset:{L_SCR + 1536}')
    a(f'ds_write_b128 v1, v[12:15] offset:{L_SCR + 1536 + 256}')
    a('s_mov_b64 exec, -1')
    a('v_lshlrev_b32 v4, 4, v0')
    a(f's_lshl_b32 s68, s4, 13'); a(f's_add_u32 s68, s68, {WS_QP}')
    loads = []
    for p in range(8):
        loads.append(f's_add_u32 s69, s68, {1024*p}')
        loads.append(f'buffer_load_dwordx4 v[{40+4*p}:{43+4*p}], v4, s[16:19], s69 offen sc1')
    poll(loads, [43 + 4*p for p in range(8)])
    for i in range(3):
        a(f'v_add_f32 v{8+i}, v{40+i}, v{44+i}')
        for p in range(2, 8): a(f'v_add_f32 v{8+i}, v{8+i}, v{40+4*p+i}')
    a('v_cvt_pk_bf16_f32 v8, v8, v9'); a('v_cvt_pk_bf16_f32 v10, v10, v10')
    a('v_mul_u32_u24 v2, 6, v0')
    a(f'ds_write_b16 v2, v8 offset:{L_QBF}')
    a(f'ds_write_b16_d16_hi v2, v8 offset:{L_QBF+2}')
    a(f'ds_write_b16 v2, v10 offset:{L_QBF+4}')
    if dbg & 2:
        a('s_lshl_b32 s67, s2, 10'); a(f's_add_u32 s67, s67, {WS_DBG + 0x100000}')
        a('v_mov_b32 v9, v10'); a('buffer_store_dwordx4 v[8:11], v4, s[16:19], s67 offen')
    a('s_waitcnt lgkmcnt(0)')
    stamp(5)
    a('s_barrier')
    stamp(6)

    def strip_loads(srdb, nrg, b1, b2):
        for r in range(nrg):
            a(f'buffer_load_dwordx4 {b1(r)}, v2, s[{srdb}:{srdb+3}], s67 offen {nt}')
            a(f'buffer_load_dwordx4 {b2(r)}, v3, s[{srdb}:{srdb+3}], s67 offen {nt}')
            if r < nrg - 1: a(f's_add_u32 s67, s67, {8*1280}')
    def strip_voffs():
        a('v_mul_u32_u24 v4, 1280, v6'); a('v_lshlrev_b32 v5, 4, v7'); a('v_add_u32 v2, v4, v5')
        a('v_and_b32 v5, 1, v7'); a('v_lshlrev_b32 v5, 4, v5'); a('v_add_u32 v3, v4, v5'); a('v_add_u32 v3, 128, v3')
    def strip_out_publish(dest_sreg):
        a('v_lshlrev_b32 v1, 9, v39'); a('v_add_u32 v1, v1, v38')
        a(f's_mov_b32 exec_lo, {VALID_LO:#x}'); a(f's_mov_b32 exec_hi, {VALID_HI:#x}')
        a(f'ds_write_b128 v1, v[8:11] offset:{L_SCR}')
        a(f'ds_write_b128 v1, v[12:15] offset:{L_SCR+256}')
        a('s_mov_b64 exec, -1')
        a('v_mul_u32_u24 v2, 12, v0'); a(f'v_add_u32 v2, {L_SCR}, v2'); a('v_lshlrev_b32 v4, 4, v0')
        a('s_waitcnt lgkmcnt(0)')
        for i in range(3): a(f'ds_read2_b32 v[{8+2*i}:{9+2*i}], v2 offset0:{i} offset1:{128+i}')
        a('s_waitcnt lgkmcnt(0)')
        a('v_add_f32 v16, v8, v9'); a('v_add_f32 v17, v10, v11'); a('v_add_f32 v18, v12, v13'); a('v_mov_b32 v19, s66')
        a('s_mov_b32 exec_lo, 0x07ffffff'); a('s_mov_b32 exec_hi, 0')
        a(f'buffer_store_dwordx4 v[16:19], v4, s[16:19], {dest_sreg} offen sc1')
        a('s_mov_b64 exec, -1')

    a('s_cmp_ge_u32 s4, 24'); a('s_cbranch_scc1 L_noB')
    a('v_mul_u32_u24 v2, 12, v0'); a(f'v_add_u32 v2, {L_SCR + 1536}, v2'); a('v_lshlrev_b32 v4, 4, v0')
    for i in range(3): a(f'ds_read2_b32 v[{8+2*i}:{9+2*i}], v2 offset0:{i} offset1:{128+i}')
    a('s_waitcnt lgkmcnt(0)')
    a('v_add_f32 v16, v8, v9'); a('v_add_f32 v17, v10, v11'); a('v_add_f32 v18, v12, v13'); a('v_mov_b32 v19, s66')
    a(f's_lshl_b32 s67, s2, 10'); a(f's_add_u32 s67, s67, {WS_GP}')
    a('s_mov_b32 exec_lo, -1'); a('s_mov_b32 exec_hi, 0x7ff')
    a('buffer_store_dwordx4 v[16:19], v4, s[16:19], s67 offen sc1')
    a('s_mov_b64 exec, -1')
    strip_voffs()
    a(f's_mul_i32 s67, s4, {64*1280}'); a('s_mul_i32 s68, s5, 160'); a('s_add_u32 s67, s67, s68')
    strip_loads(32, 8, lambda r: f'v[{72+4*r}:{75+4*r}]', lambda r: f'v[{104+4*r}:{107+4*r}]')
    a('v_lshlrev_b32 v4, 4, v0')
    a(f's_lshl_b32 s68, s4, 13'); a(f's_add_u32 s68, s68, {WS_GP}')
    a('s_mov_b32 exec_lo, -1'); a('s_mov_b32 exec_hi, 0x7ff')
    loads = []
    for p in range(8):
        loads.append(f's_add_u32 s69, s68, {1024*p}')
        loads.append(f'buffer_load_dwordx4 v[{40+4*p}:{43+4*p}], v4, s[16:19], s69 offen sc1')
    poll(loads, [43 + 4*p for p in range(8)], sleep=8)
    for i in range(3):
        a(f'v_add_f32 v{8+i}, v{40+i}, v{44+i}')
        for p in range(2, 8): a(f'v_add_f32 v{8+i}, v{8+i}, v{40+4*p+i}')
    a('v_mul_u32_u24 v2, 12, v0'); a(f'v_add_u32 v2, {L_SCR}, v2')
    a('ds_write2_b32 v2, v8, v9 offset0:0 offset1:1'); a('ds_write_b32 v2, v10 offset:8')
    a('s_mov_b64 exec, -1')
    a('v_lshlrev_b32 v2, 2, v0'); a(f'v_add_u32 v3, {L_SCR}, v2')
    a('s_waitcnt lgkmcnt(0)')
    a('ds_read2_b32 v[8:9], v3 offset0:0 offset1:64')
    a('s_waitcnt lgkmcnt(0)')
    bfround(8, 8); bfround(9, 9)
    a('v_max_f32 v8, 0, v8')
    a('v_mul_f32 v8, v8, v9')
    a('v_cvt_pk_bf16_f32 v8, v8, v8')
    a(f'ds_write_b32 v2, v8 offset:{L_HDUP}')
    a('v_lshlrev_b32 v18, 2, v6')
    a('s_waitcnt lgkmcnt(0)')
    for r in range(8): a(f'ds_read_b32 v{24+r}, v18 offset:{L_HDUP + 32*r}')
    for r in range(8, 16): a(f'v_mov_b32 v{r}, 0')
    a('s_waitcnt vmcnt(0) lgkmcnt(0)')
    for r in range(8):
        A = Areg[r & 1]
        for d in range(4): a(f'v_and_b32 v{A+d}, v{24+r}, v{20+d}')
        a(f'v_mfma_f32_16x16x32_bf16 v[8:11], v[{A}:{A+3}], v[{72+4*r}:{75+4*r}], v[8:11]')
        a(f'v_mfma_f32_16x16x32_bf16 v[12:15], v[{A}:{A+3}], v[{104+4*r}:{107+4*r}], v[12:15]')
    a('s_mul_i32 s67, s5, 24'); a('s_add_u32 s67, s67, s4'); a('s_lshl_b32 s67, s67, 9'); a(f's_add_u32 s67, s67, {WS_BP}')
    strip_out_publish('s67')
    a.label('L_noB')
    stamp(8)

    strip_voffs()
    a(f's_mul_i32 s67, s4, {192*1280}'); a('s_mul_i32 s68, s5, 160'); a('s_add_u32 s67, s67, s68')
    strip_loads(20, 24, lambda r: f'v[{40+4*r}:{43+4*r}]', lambda r: f'a[{4*r}:{3+4*r}]')
    stamp(9)
    a('v_cmp_lt_u32 vcc, 26, v0'); a('v_cndmask_b32 v34, 0, 1, vcc')
    a('v_mul_u32_u24 v35, 27, v34'); a('v_sub_u32 v35, v0, v35')
    a('s_add_u32 s71, s5, 24')
    a('s_cmp_lg_u32 s4, s71'); a('s_cbranch_scc1 L_nocons')
    a('v_lshlrev_b32 v2, 9, v34'); a('v_lshlrev_b32 v3, 4, v35'); a('v_add_u32 v2, v2, v3')
    a(f's_mul_i32 s68, s5, {24*512}'); a(f's_add_u32 s68, s68, {WS_BP}')
    a('s_mov_b32 exec_lo, -1'); a('s_mov_b32 exec_hi, 0x003fffff')
    T = 136
    BR = [T + 4*i for i in range(6)] + [8, 12, 16, 24]
    accs = [28, 29, 30]
    for half in range(2):
        loads = []
        for i in range(6):
            loads.append(f's_add_u32 s69, s68, {1024*(6*half+i)}')
            loads.append(f'buffer_load_dwordx4 v[{T+4*i}:{T+3+4*i}], v2, s[16:19], s69 offen sc1')
        poll(loads, [T + 3 + 4*i for i in range(6)], sleep=slowsleep)
        for i in range(3):
            for p in range(6):
                if half == 0 and p == 0: a(f'v_mov_b32 v{accs[i]}, v{T+i}')
                else: a(f'v_add_f32 v{accs[i]}, v{accs[i]}, v{T+4*p+i}')
    a('s_mov_b64 exec, -1')
    a('v_add_u32 v3, 27, v0'); a('v_lshlrev_b32 v3, 2, v3')
    for i in range(3): a(f'ds_bpermute_b32 v{12+i}, v3, v{28+i}')
    a('s_mul_i32 s67, s5, 160'); a('v_mul_u32_u24 v4, 6, v35'); a('v_add_u32 v4, s67, v4')
    for i in range(3): a(f'buffer_load_ushort v{16+i}, v4, s[8:11], 0 offen offset:{2*i}')
    a('s_waitcnt lgkmcnt(0)')
    for i in range(3):
        a(f'v_add_f32 v{8+i}, v{28+i}, v{12+i}')
    for i in range(3):
        bfround(8+i, 8+i)
        a(f'v_mul_f32 v12, {NLOG2E:#x}, v{8+i}'); a('v_exp_f32 v12, v12'); a('v_add_f32 v12, 1.0, v12'); a('v_rcp_f32 v13, v12')
        a(f'v_mul_f32 v14, v{8+i}, v13')
        bfround(28+i, 14)
    a('s_waitcnt vmcnt(0)')
    for i in range(3): a(f'v_lshlrev_b32 v{31+i}, 16, v{16+i}')
    a.label('L_nocons')
    a('s_waitcnt vmcnt(0)')
    stamp(16)
    a('s_barrier')
    stamp(17)
    a('v_mul_u32_u24 v2, 12, v0'); a(f'v_add_u32 v2, {L_DW}, v2')
    a(f'v_mov_b32 v3, {L_ML}')
    a('ds_read_b128 v[8:11], v3'); a('ds_read_b128 v[12:15], v3 offset:16')
    for w in range(4):
        for i in range(3):
            r = T + (w*3+i)*2
            a(f'ds_read2_b32 v[{r}:{r+1}], v2 offset0:{i} offset1:{192+i}')
        if w < 3: a('v_add_u32 v2, 1536, v2')
    a('s_waitcnt lgkmcnt(12)')
    a('v_max_f32 v16, v8, v10'); a('v_max3_f32 v16, v16, v12, v14')
    for w, (mr, lr) in enumerate([(8,9),(10,11),(12,13),(14,15)]):
        a(f'v_sub_f32 v{mr}, v{mr}, v16'); a(f'v_mul_f32 v{mr}, {LOG2E:#x}, v{mr}'); a(f'v_exp_f32 v{mr}, v{mr}')
    a('v_mul_f32 v17, v8, v9'); a('v_fmac_f32 v17, v10, v11'); a('v_fmac_f32 v17, v12, v13'); a('v_fmac_f32 v17, v14, v15')
    a('s_waitcnt lgkmcnt(0)')
    for i in range(3):
        for w in range(4):
            r = T + (w*3+i)*2
            a(f'v_add_f32 v{r}, v{r}, v{r+1}')
            if w == 0: a(f'v_mul_f32 v{24+i}, v{r}, v8')
            else: a(f'v_fmac_f32 v{24+i}, v{r}, v{8+2*w}')
    a('v_mov_b32 v27, s66')
    a('v_lshlrev_b32 v4, 4, v0')
    a(f's_lshl_b32 s67, s2, 11'); a(f's_add_u32 s67, s67, {WS_OP}')
    a('buffer_store_dwordx4 v[24:27], v4, s[16:19], s67 offen sc1')
    a('v_mov_b32 v18, 0'); a('v_mov_b32 v19, s66')
    a('s_mov_b64 exec, 1')
    a('v_mov_b32 v5, 0')
    a('buffer_store_dwordx4 v[16:19], v5, s[16:19], s67 offen offset:1024 sc1')
    a('s_mov_b64 exec, -1')
    stamp(18)
    a(f's_lshl_b32 s68, s4, 14'); a(f's_add_u32 s68, s68, {WS_OP}')
    a('v_and_b32 v5, 7, v0'); a('v_lshlrev_b32 v5, 11, v5'); a('v_add_u32 v3, 1024, v5')
    loads = [f'buffer_load_dwordx4 v[8:11], v3, s[16:19], s68 offen sc1']
    for p in range(6):
        loads.append(f's_add_u32 s69, s68, {2048*p}')
        loads.append(f'buffer_load_dwordx4 v[{T+4*p}:{T+3+4*p}], v4, s[16:19], s69 offen sc1')
    for p in range(6, 8):
        loads.append(f's_add_u32 s69, s68, {2048*p}')
        loads.append(f'buffer_load_dwordx4 v[{12+4*(p-6)}:{15+4*(p-6)}], v4, s[16:19], s69 offen sc1')
    PR = [T+4*p for p in range(6)] + [12, 16]
    poll(loads, [11] + [r+3 for r in PR])
    stamp(19)
    a('v_mov_b32 v10, v8')
    for pat in ('quad_perm:[1,0,3,2]', 'quad_perm:[2,3,0,1]', 'row_half_mirror'):
        a(f'v_max_f32_dpp v10, v10, v10 {pat} row_mask:0xf bank_mask:0xf')
    a('v_sub_f32 v8, v8, v10'); a(f'v_mul_f32 v8, {LOG2E:#x}, v8'); a('v_exp_f32 v8, v8')
    a('v_mul_f32 v9, v8, v9')
    for pat in ('quad_perm:[1,0,3,2]', 'quad_perm:[2,3,0,1]', 'row_half_mirror'):
        a(f'v_add_f32_dpp v9, v9, v9 {pat} row_mask:0xf bank_mask:0xf')
    a('v_rcp_f32 v10, v9')
    a('v_mul_f32 v11, v8, v10'); a('v_fma_f32 v5, -v11, v9, v8'); a('v_fma_f32 v8, v5, v10, v11')
    for p in range(8): a(f'v_readlane_b32 s{76+p}, v8, {p}')
    for i in range(3):
        a(f'v_mul_f32 v{24+i}, s76, v{PR[0]+i}')
        for p in range(1, 8): a(f'v_fmac_f32 v{24+i}, s{76+p}, v{PR[p]+i}')
    a('v_mul_u32_u24 v2, 12, v0')
    for i in range(3): a(f'v_cvt_pk_bf16_f32 v{24+i}, v{24+i}, v{24+i}')
    a(f'v_add_u32 v2, {L_ODUP}, v2')
    a('ds_write2_b32 v2, v24, v25 offset0:0 offset1:1'); a('ds_write_b32 v2, v26 offset:8')
    if dbg & 4:
        a('s_lshl_b32 s67, s2, 10'); a(f's_add_u32 s67, s67, {WS_DBG + 0x140000}')
        a('buffer_store_dwordx4 v[24:27], v4, s[16:19], s67 offen')
    a('v_lshlrev_b32 v18, 2, v6')
    a('s_waitcnt lgkmcnt(0)')
    for r in range(24): a(f'ds_read_b32 v{T+r}, v18 offset:{L_ODUP + 32*r}')
    for r in range(8, 16): a(f'v_mov_b32 v{r}, 0')
    Areg2 = [16, 24]
    for r in range(24):
        if r == 0: a('s_waitcnt lgkmcnt(0)')
        A = Areg2[r & 1]
        for d in range(4): a(f'v_and_b32 v{A+d}, v{T+r}, v{20+d}')
        a(f'v_mfma_f32_16x16x32_bf16 v[8:11], v[{A}:{A+3}], v[{40+4*r}:{43+4*r}], v[8:11]')
        a(f'v_mfma_f32_16x16x32_bf16 v[12:15], v[{A}:{A+3}], a[{4*r}:{3+4*r}], v[12:15]')
    a('s_lshl_b32 s67, s5, 5'); a('s_add_u32 s67, s67, s4'); a('s_lshl_b32 s67, s67, 9'); a(f's_add_u32 s67, s67, {WS_YP}')
    strip_out_publish('s67')
    stamp(20)
    a('s_cmp_lg_u32 s4, s71'); a('s_cbranch_scc1 L_fin')
    a('v_lshlrev_b32 v2, 9, v34'); a('v_lshlrev_b32 v3, 4, v35'); a('v_add_u32 v2, v2, v3')
    a(f's_lshl_b32 s68, s5, 14'); a(f's_add_u32 s68, s68, {WS_YP}')
    a('s_mov_b32 exec_lo, -1'); a('s_mov_b32 exec_hi, 0x003fffff')
    loads = []
    for i in range(16):
        loads.append(f's_add_u32 s69, s68, {1024*i}')
        loads.append(f'buffer_load_dwordx4 v[{40+4*i}:{43+4*i}], v2, s[16:19], s69 offen sc1')
    poll(loads, [43 + 4*i for i in range(16)])
    for i in range(3):
        a(f'v_add_f32 v{8+i}, v{40+i}, v{44+i}')
        for p in range(2, 16): a(f'v_add_f32 v{8+i}, v{8+i}, v{40+4*p+i}')
    a('s_mov_b64 exec, -1')
    a('v_add_u32 v3, 27, v0'); a('v_lshlrev_b32 v3, 2, v3')
    for i in range(3): a(f'ds_bpermute_b32 v{12+i}, v3, v{8+i}')
    a('s_waitcnt lgkmcnt(0)')
    for i in range(3):
        a(f'v_add_f32 v{8+i}, v{8+i}, v{12+i}')
        bfround(8+i, 8+i)
        a(f'v_mul_f32 v{8+i}, v{8+i}, v{28+i}')
        bfround(8+i, 8+i)
        a(f'v_add_f32 v{8+i}, v{8+i}, v{31+i}')
        a(f'v_cvt_pk_bf16_f32 v{8+i}, v{8+i}, v{8+i}')
    stamp(21)
    a('s_mul_i32 s67, s5, 160'); a('v_mul_u32_u24 v4, 6, v35'); a('v_add_u32 v4, s67, v4')
    a('s_mov_b32 exec_lo, 0x07ffffff'); a('s_mov_b32 exec_hi, 0')
    a('buffer_store_short v8, v4, s[36:39], 0 offen')
    a('buffer_store_short v9, v4, s[36:39], 0 offen offset:2')
    a('s_mov_b32 exec_lo, 0x03ffffff')
    a('buffer_store_short v10, v4, s[36:39], 0 offen offset:4')
    a('s_cmp_lg_u32 s5, 0'); a('s_cbranch_scc1 L_fin')
    a('s_mov_b64 exec, 1'); a('v_mov_b32 v5, 0'); a('v_mov_b32 v1, s66')
    a('buffer_store_dword v1, v5, s[16:19], 0 offen sc1')
    a.label('L_fin')
    if ts:
        a('s_mov_b64 exec, -1')
        stamp(22)
        a('s_mov_b64 exec, 1'); a('v_mov_b32 v36, s90'); a(f'v_mov_b32 v37, {L_STAMP}'); a('ds_write_b32 v37, v36'); a('s_waitcnt lgkmcnt(0)'); a('s_mov_b64 exec, -1')
        a('v_lshlrev_b32 v6, 2, v0'); a(f'v_add_u32 v7, {L_STAMP}, v6'); a('ds_read_b32 v26, v7'); a('s_waitcnt lgkmcnt(0)')
        a('s_lshl_b32 s32, s2, 8'); a(f's_add_u32 s32, s32, {WS_DBG + 0x40000}')
        a('buffer_store_dword v26, v6, s[16:19], s32 offen')
    a.label('L_exit')
    a('s_endpgm')
    body = a.finish()
    hdr = f'''; fused decode kernel: LN + q-proj + split-K attention (dynamic balance) + out-proj + ReGLU branch
; @launch grid=(256,1,1) block=(320,1,1) lds={LDS_SIZE}
.amdgcn_target "amdgcn-amd-amdhsa--gfx950"
.text
.globl {NAME}_kernel
.p2align 8
.type {NAME}_kernel,@function
{NAME}_kernel:
'''
    ftr = f'''
.section .rodata,"a"
.p2align 6
.amdhsa_kernel {NAME}_kernel
  .amdhsa_next_free_vgpr 256
  .amdhsa_next_free_sgpr 96
  .amdhsa_accum_offset 160
  .amdhsa_group_segment_fixed_size 0
  .amdhsa_kernarg_size 96
  .amdhsa_user_sgpr_count 2
  .amdhsa_user_sgpr_kernarg_segment_ptr 1
  .amdhsa_system_sgpr_workgroup_id_x 1
  .amdhsa_float_denorm_mode_32 3
.end_amdhsa_kernel
'''
    return hdr + body + ftr, a.nfix

if __name__ == '__main__':
    ap = argparse.ArgumentParser()
    ap.add_argument('-o', default='k.s')
    for n, d in [('skip', 0), ('SE', 48), ('P', 4), ('D', 2), ('NL', 3), ('mix', 1), ('dbg', 0), ('ts', 0), ('prio', 3), ('paced', 1), ('slowsleep', 32), ('bar0', 1)]:
        ap.add_argument('--' + n, type=int, default=d)
    x = ap.parse_args()
    s, nf = gen(skip=x.skip, SE=x.SE, P=x.P, D=x.D, NL=x.NL, mix=x.mix, dbg=x.dbg, ts=x.ts, prio=x.prio, paced=x.paced, slowsleep=x.slowsleep, bar0=x.bar0)
    open(x.o, 'w').write(s)
    print('wrote', x.o, 'nops inserted:', nf)
```
